```python
import torch

def _softmax(x, axis=-1):
    return torch.softmax(x, dim=axis)
def _gelu(x):
    return torch.nn.functional.gelu(x, approximate="tanh")
def _silu(x):
    return torch.nn.functional.silu(x)
def _sigmoid(x):
    return torch.sigmoid(x)
def _layernorm(x, axis=-1, eps=1e-5):
    m = x.mean(dim=axis, keepdim=True)
    v = x.var(dim=axis, keepdim=True, unbiased=False)
    return (x - m) / torch.sqrt(v + eps)
def _scatter_add(tgt, idx, src, axis=0):
    return tgt.clone().index_add_(axis, idx, src)
def _segment_sum(src, seg, n):
    out = torch.zeros((n,) + src.shape[1:], dtype=src.dtype)
    return out.index_add_(0, seg, src)
def _pad(x, pw):
    flat = tuple(v for pair in reversed(pw) for v in pair)
    return torch.nn.functional.pad(x, flat)

kernel_name = 'concat_heads__gqa_block_cached__sliding_block_cached__decode'

def setup_inputs():

    _w = (lambda a: (lambda t: t.to(torch.bfloat16) if t.is_floating_point() else t)(torch.as_tensor(a)))
    def _A_setup():
        B, Sq, D = 1, 1, 640
        Hq, Hkv, Sk, Dh = 32, 32, 8192, 128
        assert Hq % Hkv == 0, (Hq, Hkv)
        return {
            "x": _w((lambda *s: torch.randn(*s, dtype=torch.bfloat16) * 0.8)(B, Sq, D)),
            "k_cache": _w((lambda *s: torch.randn(*s, dtype=torch.bfloat16) * 1.6)(B, Hkv, Sk, Dh)),
            "v_cache": _w((lambda *s: torch.randn(*s, dtype=torch.bfloat16) * 0.2)(B, Hkv, Sk, Dh)),
            "wq": _w((lambda *s: torch.randn(*s, dtype=torch.bfloat16) * 1.6)(D, Hq * Dh) * (D ** -0.5)),
            "wo": _w((lambda *s: torch.randn(*s, dtype=torch.bfloat16) * 0.2)(Hq * Dh, D) * ((Hq * Dh) ** -0.5)),
        }
    _A_in = _A_setup()

    def _B_setup():
        B, Sq, D = 1, 1, 640
        Hq, Hkv, Sk, Dh = 32, 32, 8192, 128
        assert Hq % Hkv == 0, (Hq, Hkv)
        return {
            "x": _w((lambda *s: torch.randn(*s, dtype=torch.bfloat16) * 0.8)(B, Sq, D)),
            "k_cache": _w((lambda *s: torch.randn(*s, dtype=torch.bfloat16) * 1.6)(B, Hkv, Sk, Dh)),
            "v_cache": _w((lambda *s: torch.randn(*s, dtype=torch.bfloat16) * 0.2)(B, Hkv, Sk, Dh)),
            "wq": _w((lambda *s: torch.randn(*s, dtype=torch.bfloat16) * 1.6)(D, Hq * Dh) * (D ** -0.5)),
            "wo": _w((lambda *s: torch.randn(*s, dtype=torch.bfloat16) * 0.2)(Hq * Dh, D) * ((Hq * Dh) ** -0.5)),
        }
    _B_in = _B_setup()

    return {
        "A_x": _A_in["x"],
        "A_k_cache": _A_in["k_cache"],
        "A_v_cache": _A_in["v_cache"],
        "A_wq": _A_in["wq"],
        "A_wo": _A_in["wo"],
        "B_x": _B_in["x"],
        "B_k_cache": _B_in["k_cache"],
        "B_v_cache": _B_in["v_cache"],
        "B_wq": _B_in["wq"],
        "B_wo": _B_in["wo"],
    }

def reference(A_x, A_k_cache, A_v_cache, A_wq, A_wo, B_x, B_k_cache, B_v_cache, B_wq, B_wo):
    def _A_ref(x, k_cache, v_cache, wq, wo):
        B, Sq, D = x.shape
        Hq, Dh = 32, 128
        Hkv = k_cache.shape[1]
        rep = Hq // Hkv
        q = (lambda x, *d: x.permute(*d))((x @ wq).reshape(B, Sq, Hq, Dh), 0, 2, 1, 3)
        k = (lambda x, n, axis: torch.repeat_interleave(x, n, dim=axis))(k_cache, rep, axis=1)
        v = (lambda x, n, axis: torch.repeat_interleave(x, n, dim=axis))(v_cache, rep, axis=1)
        scores = torch.einsum("bhqd,bhkd->bhqk", q, k) * (Dh ** -0.5)
        p = _softmax(scores, axis=-1)
        o = torch.einsum("bhqk,bhkd->bhqd", p, v)
        return (lambda x, *d: x.permute(*d))(o, 0, 2, 1, 3).reshape(B, Sq, Hq * Dh) @ wo

    def _B_ref(x, k_cache, v_cache, wq, wo):
        B, Sq, D = x.shape
        Hq, Dh = 32, 128
        Hkv, Sk = k_cache.shape[1], k_cache.shape[2]
        W = min(4096, max(256, Sk // 4))
        rep = Hq // Hkv
        q = (lambda x, *d: x.permute(*d))((x @ wq).reshape(B, Sq, Hq, Dh), 0, 2, 1, 3)
        k = (lambda x, n, axis: torch.repeat_interleave(x, n, dim=axis))(k_cache[:, :, Sk - W:, :], rep, axis=1)
        v = (lambda x, n, axis: torch.repeat_interleave(x, n, dim=axis))(v_cache[:, :, Sk - W:, :], rep, axis=1)
        scores = torch.einsum("bhqd,bhkd->bhqk", q, k) * (Dh ** -0.5)
        p = _softmax(scores, axis=-1)
        o = torch.einsum("bhqk,bhkd->bhqd", p, v)
        return (lambda x, *d: x.permute(*d))(o, 0, 2, 1, 3).reshape(B, Sq, Hq * Dh) @ wo

    a = _A_ref(A_x, A_k_cache, A_v_cache, A_wq, A_wo)
    b = _B_ref(B_x, B_k_cache, B_v_cache, B_wq, B_wo)
    return torch.concatenate([a, b], axis=-1)
```

```python
H=open('concat_heads__gqa_block_cached__sliding_block_cached__decode.s.ref').read().split('; Override launch')[0]
o=[]
A=o.append
A(H.rstrip('\n'))
A('; @launch kernel=qp_kernel grid=(512,1,1) block=(256,1,1) lds=8192')
A('; @launch kernel=at_kernel grid=(1280,1,1) block=(256,1,1) lds=8448')
A('; @launch kernel=op_kernel grid=(320,1,1) block=(256,1,1) lds=9216')
A('; @launch kernel=fin_kernel grid=(5,1,1) block=(256,1,1) lds=0')
A('.amdgcn_target "amdgcn-amd-amdhsa--gfx950"\n.text')
K=[]
def kern(n,body,vg):
    A(f'.globl {n}\n.p2align 8\n.type {n},@function\n{n}:'); A(body); A(f'{n}_end:\ns_endpgm'); K.append((n,vg))
def srd(d,b,n): return f's_mov_b32 s{d}, s{b}\ns_and_b32 s{d+1}, s{b+1}, 0xffff\ns_mov_b32 s{d+2}, {n}\ns_mov_b32 s{d+3}, 0x20000\n'
WS=289409536; OACC=0x40000; OML=0x100000; OOP=0x110000
RED='''v_lshlrev_b32 v10, 5, v0
ds_write_b128 v10, v[32:35]
ds_write_b128 v10, v[36:39] offset:16
s_waitcnt lgkmcnt(0)
s_barrier
v_and_b32 v11, 7, v0
v_lshlrev_b32 v12, 2, v11
v_lshrrev_b32 v11, 3, v0
v_lshl_add_u32 v12, v11, 5, v12
v_mov_b32 v20, 0
'''+''.join(f'ds_read_b32 v{40+j%8}, v12 offset:{j*256}\n'+('s_waitcnt lgkmcnt(0)\n'+''.join(f'v_add_f32 v20, v20, v{40+k}\n' for k in range(8)) if j%8==7 else '') for j in range(32))
def fma8(src,x):
    r=''
    for k in range(4):
        r+=f'v_lshlrev_b32 v2, 16, v{src+k}\nv_and_b32 v3, 0xffff0000, v{src+k}\nv_fmac_f32 v{32+2*k}, v2, v{x}\nv_fmac_f32 v{33+2*k}, v3, v{x}\n'
    return r
Z=''.join(f'v_mov_b32 v{32+k}, 0\n' for k in range(8))
b='''s_cmp_ge_u32 s2, 512
s_cbranch_scc1 qp_kernel_end
s_lshr_b32 s3, s2, 8
s_load_dwordx2 s[4:5], s[0:1], 0
s_load_dwordx2 s[6:7], s[0:1], 24
s_load_dwordx2 s[10:11], s[0:1], 40
s_load_dwordx2 s[30:31], s[0:1], 64
s_load_dwordx2 s[8:9], s[0:1], 96
s_waitcnt lgkmcnt(0)
s_cmp_ge_u32 s2, 256
s_cselect_b32 s4, s10, s4
s_cselect_b32 s5, s11, s5
s_cselect_b32 s6, s30, s6
s_cselect_b32 s7, s31, s7
'''+srd(12,4,1280)+srd(16,6,5242880)+srd(20,8,WS)+'''s_and_b32 s24, s2, 3
s_mul_i32 s24, s24, 160
s_lshr_b32 s25, s2, 2
s_and_b32 s25, s25, 63
s_lshl_b32 s25, s25, 7
v_lshrrev_b32 v1, 3, v0
v_add_u32 v1, s24, v1
v_and_b32 v2, 7, v0
v_lshlrev_b32 v2, 4, v2
v_add_u32 v2, s25, v2
v_lshl_add_u32 v2, v1, 13, v2
v_lshlrev_b32 v3, 1, v1
'''
for i in range(5):
    b+=f'buffer_load_ushort v{24+i}, v3, s[12:15], 0 offen offset:{i*64}\nbuffer_load_dwordx4 v[{44+4*i}:{47+4*i}], v2, s[16:19], 0 offen\nv_add_u32 v2, 0x40000, v2\n'
b+=Z+'s_waitcnt vmcnt(0)\n'
for i in range(5): b+=f'v_lshlrev_b32 v23, 16, v{24+i}\n'+fma8(44+4*i,23)
b+=RED+'''s_and_b32 s24, s2, 3
s_lshl_b32 s24, s24, 14
s_lshl_b32 s3, s3, 16
s_add_u32 s24, s24, s3
s_lshl_b32 s25, s25, 1
s_add_u32 s24, s24, s25
v_lshlrev_b32 v1, 2, v0
v_cmp_gt_u32 vcc, 64, v0
s_and_saveexec_b64 s[26:27], vcc
s_cbranch_execz qp_kernel_end
buffer_store_dword v20, v1, s[20:23], s24 offen
s_waitcnt vmcnt(0)
'''
kern('qp_kernel',b,64)
b='''s_cmp_ge_u32 s2, 1280
s_cbranch_scc1 at_kernel_end
s_load_dwordx4 s[4:7], s[0:1], 8
s_load_dwordx4 s[8:11], s[0:1], 48
s_load_dwordx2 s[28:29], s[0:1], 96
s_waitcnt lgkmcnt(0)
s_lshr_b32 s24, s2, 5
s_and_b32 s25, s2, 31
s_sub_u32 s26, s2, 1024
s_lshr_b32 s27, s26, 3
s_and_b32 s26, s26, 7
s_add_u32 s26, s26, 24
s_cmp_ge_u32 s2, 1024
s_cselect_b32 s4, s8, s4
s_cselect_b32 s5, s9, s5
s_cselect_b32 s6, s10, s6
s_cselect_b32 s7, s11, s7
s_cselect_b32 s24, s27, s24
s_cselect_b32 s25, s26, s25
s_cselect_b32 s30, 0x10000, 0
'''+srd(12,4,0x4000000)+srd(16,6,0x4000000)+srd(20,28,WS)+'''s_lshl_b32 s31, s24, 9
s_add_u32 s30, s30, s31
v_and_b32 v1, 15, v0
v_lshlrev_b32 v1, 5, v1
'''
for k in range(4): b+=f's_add_u32 s31, s30, {k*0x4000}\nbuffer_load_dwordx4 v[{32+8*k}:{35+8*k}], v1, s[20:23], s31 offen\nbuffer_load_dwordx4 v[{36+8*k}:{39+8*k}], v1, s[20:23], s31 offen offset:16\n'
b+='''s_lshl_b32 s31, s24, 21
s_lshl_b32 s25, s25, 16
s_add_u32 s31, s31, s25
v_and_b32 v2, 63, v0
v_lshlrev_b32 v2, 4, v2
v_lshrrev_b32 v3, 6, v0
v_lshl_add_u32 v2, v3, 14, v2
v_add_u32 v2, s31, v2
s_mov_b32 s32, 0
s_mov_b32 s33, 4096
s_mov_b32 s34, 8192
s_mov_b32 s35, 12288
'''
for t,sr in ((64,12),(128,16)):
    for i in range(16): b+=f'buffer_load_dwordx4 v[{t+4*i}:{t+3+4*i}], v2, s[{sr}:{sr+3}], s{32+i//4} offen offset:{(i%4)*1024}\n'
b+='s_waitcnt vmcnt(32)\n'
for k in range(1,4): b+=''.join(f'v_add_f32 v{32+j}, v{32+j}, v{32+8*k+j}\n' for j in range(8))
b+=''.join(f'v_cvt_pk_bf16_f32 v{4+j}, v{32+2*j}, v{33+2*j}\n' for j in range(4))
b+='s_waitcnt vmcnt(16)\n'
for i in range(16):
    b+=f'v_mov_b32 v{16+i}, 0\n'+''.join(f'v_dot2_f32_bf16 v{16+i}, v{64+4*i+j}, v{4+j}, v{16+i}\n' for j in range(4))
b+='s_nop 4\n'
for r in (8,4,2,1):
    for i in range(16): b+=f'v_add_f32_dpp v{40+i}, v{16+i}, v{16+i} row_ror:{r} row_mask:0xf bank_mask:0xf\n'
    b+='s_nop 1\n'+''.join(f'v_mov_b32 v{16+i}, v{40+i}\n' for i in range(16))+'s_nop 1\n'
b+='s_mov_b32 s36, 0x3db504f3\n'
for i in range(16):
    b+=f'v_cvt_pk_bf16_f32 v40, v{16+i}, v{16+i}\nv_lshlrev_b32 v40, 16, v40\nv_mul_f32 v40, s36, v40\nv_cvt_pk_bf16_f32 v40, v40, v40\nv_lshlrev_b32 v{16+i}, 16, v40\n'
b+='v_mov_b32 v8, v16\n'+''.join(f'v_max_f32 v8, v8, v{16+i}\n' for i in range(1,16))
b+='s_mov_b32 s36, 0x3fb8aa3b\nv_mov_b32 v9, 0\n'+Z
for i in range(16): b+=f'v_sub_f32 v{16+i}, v{16+i}, v8\nv_mul_f32 v{16+i}, s36, v{16+i}\nv_exp_f32 v{16+i}, v{16+i}\ns_nop 0\nv_add_f32 v9, v9, v{16+i}\n'
b+='s_waitcnt vmcnt(0)\n'
for i in range(16): b+=fma8(128+4*i,16+i)
b+=f'''v_lshlrev_b32 v10, 5, v0
ds_write_b128 v10, v[32:35]
ds_write_b128 v10, v[36:39] offset:16
v_lshrrev_b32 v11, 4, v0
v_lshlrev_b32 v11, 3, v11
ds_write_b64 v11, v[8:9] offset:8192
s_waitcnt lgkmcnt(0)
s_barrier
v_cmp_gt_u32 vcc, 128, v0
s_and_saveexec_b64 s[26:27], vcc
s_cbranch_execz at_kernel_end
v_mov_b32 v12, 0
'''+''.join(f'ds_read_b64 v[{40+2*g}:{41+2*g}], v12 offset:{8192+8*g}\n' for g in range(16))
b+='v_lshlrev_b32 v12, 2, v0\n'+''.join(f'ds_read_b32 v{72+g}, v12 offset:{512*g}\n' for g in range(16))
b+='s_waitcnt lgkmcnt(0)\nv_mov_b32 v8, v40\n'+''.join(f'v_max_f32 v8, v8, v{40+2*g}\n' for g in range(1,16))
b+='v_mov_b32 v9, 0\nv_mov_b32 v20, 0\n'
for g in range(16): b+=f'v_sub_f32 v21, v{40+2*g}, v8\nv_mul_f32 v21, s36, v21\nv_exp_f32 v21, v21\ns_nop 0\nv_fmac_f32 v9, v21, v{41+2*g}\nv_fmac_f32 v20, v21, v{72+g}\n'
b+=f'''s_lshl_b32 s31, s2, 9
s_add_u32 s31, s31, {OACC}
buffer_store_dword v20, v12, s[20:23], s31 offen
s_lshl_b32 s31, s2, 3
s_add_u32 s31, s31, {OML}
v_mov_b32 v12, 0
v_cmp_eq_u32 vcc, 0, v0
s_and_saveexec_b64 s[26:27], vcc
s_cbranch_execz at_kernel_end
buffer_store_dwordx2 v[8:9], v12, s[20:23], s31 offen
s_waitcnt vmcnt(0)
'''
kern('at_kernel',b,192)
b='''s_cmp_ge_u32 s2, 320
s_cbranch_scc1 op_kernel_end
s_load_dwordx2 s[4:5], s[0:1], 32
s_load_dwordx2 s[6:7], s[0:1], 72
s_load_dwordx2 s[28:29], s[0:1], 96
s_waitcnt lgkmcnt(0)
s_cmp_ge_u32 s2, 160
s_cselect_b32 s4, s6, s4
s_cselect_b32 s5, s7, s5
s_cselect_b32 s3, 1, 0
s_cselect_b32 s24, 160, 0
s_cselect_b32 s38, 8, 32
s_cselect_b32 s39, 1024, 0
s_sub_u32 s24, s2, s24
s_mul_i32 s25, s24, 6554
s_lshr_b32 s25, s25, 16
s_mul_i32 s26, s25, 10
s_sub_u32 s26, s24, s26
'''+srd(16,4,5242880)+srd(20,28,WS)+'''s_lshl_b32 s27, s25, 1
v_lshrrev_b32 v1, 7, v0
v_add_u32 v1, s27, v1
v_mul_lo_u32 v1, v1, s38
v_add_u32 v1, s39, v1
v_lshlrev_b32 v2, 3, v1
v_and_b32 v3, 127, v0
v_lshlrev_b32 v3, 2, v3
v_lshl_add_u32 v3, v1, 9, v3
s_mov_b32 s36, 0x3fb8aa3b
v_mov_b32 v8, 0xff800000
v_mov_b32 v9, 0
v_mov_b32 v20, 0
s_mov_b32 s37, 0
op_loop:
buffer_load_dwordx2 v[4:5], v2, s[20:23], 0 offen offset:0
buffer_load_dword v6, v3, s[20:23], 0 offen
'''.replace('offen offset:0\n','offen\n')
b=b.replace('v_lshlrev_b32 v2, 3, v1\n',f'v_lshlrev_b32 v2, 3, v1\nv_add_u32 v2, {OML}, v2\n').replace('v_lshl_add_u32 v3, v1, 9, v3\n',f'v_lshl_add_u32 v3, v1, 9, v3\nv_add_u32 v3, {OACC}, v3\n')
b+='''s_waitcnt vmcnt(0)
v_max_f32 v7, v8, v4
v_sub_f32 v10, v8, v7
v_sub_f32 v11, v4, v7
v_mul_f32 v10, s36, v10
v_mul_f32 v11, s36, v11
v_exp_f32 v10, v10
v_exp_f32 v11, v11
s_nop 0
v_mul_f32 v9, v9, v10
v_mul_f32 v20, v20, v10
v_fmac_f32 v9, v5, v11
v_fmac_f32 v20, v6, v11
v_mov_b32 v8, v7
v_add_u32 v2, 8, v2
v_add_u32 v3, 512, v3
s_add_u32 s37, s37, 1
s_cmp_lt_u32 s37, s38
s_cbranch_scc1 op_loop
v_rcp_f32 v9, v9
s_nop 0
v_mul_f32 v20, v20, v9
v_cvt_pk_bf16_f32 v20, v20, v20
v_lshlrev_b32 v20, 16, v20
v_lshlrev_b32 v10, 2, v0
ds_write_b32 v10, v20 offset:8192
s_waitcnt lgkmcnt(0)
s_barrier
v_lshrrev_b32 v1, 3, v0
v_lshlrev_b32 v10, 2, v1
'''+''.join(f'ds_read_b32 v{24+i}, v10 offset:{8192+128*i}\n' for i in range(8))+'''s_lshl_b32 s27, s25, 8
v_add_u32 v1, s27, v1
v_mul_u32_u24 v1, 1280, v1
v_and_b32 v2, 7, v0
v_lshlrev_b32 v2, 4, v2
v_add_u32 v2, v1, v2
s_lshl_b32 s27, s26, 7
v_add_u32 v2, s27, v2
'''
for i in range(8): b+=f'buffer_load_dwordx4 v[{44+4*i}:{47+4*i}], v2, s[16:19], 0 offen\nv_add_u32 v2, 40960, v2\n'
b+=Z+'s_waitcnt vmcnt(0) lgkmcnt(0)\n'
for i in range(8): b+=fma8(44+4*i,24+i)
b+=RED+f'''s_mul_i32 s24, s3, 16
s_add_u32 s24, s24, s25
s_mul_i32 s24, s24, 2560
s_lshl_b32 s27, s26, 8
s_add_u32 s24, s24, s27
s_add_u32 s24, s24, {OOP}
v_lshlrev_b32 v1, 2, v0
v_cmp_gt_u32 vcc, 64, v0
s_and_saveexec_b64 s[26:27], vcc
s_cbranch_execz op_kernel_end
buffer_store_dword v20, v1, s[20:23], s24 offen
s_waitcnt vmcnt(0)
'''
kern('op_kernel',b,80)
b='''s_cmp_ge_u32 s2, 5
s_cbranch_scc1 fin_kernel_end
s_load_dwordx2 s[4:5], s[0:1], 80
s_load_dwordx2 s[28:29], s[0:1], 96
s_waitcnt lgkmcnt(0)
'''+srd(16,4,2560)+srd(20,28,WS)+f'''s_lshl_b32 s3, s2, 8
v_add_u32 v1, s3, v0
v_cmp_le_u32 vcc, 640, v1
s_nop 1
v_cndmask_b32 v2, 0, 1, vcc
v_mul_u32_u24 v3, 38400, v2
v_lshl_add_u32 v3, v1, 2, v3
v_add_u32 v3, {OOP}, v3
'''+''.join(f'buffer_load_dword v{8+j}, v3, s[20:23], 0 offen offset:{0}\nv_add_u32 v3, 2560, v3\n' for j in range(16))+'s_waitcnt vmcnt(0)\n'+''.join(f'v_add_f32 v8, v8, v{8+j}\n' for j in range(1,16))+'''v_cvt_pk_bf16_f32 v8, v8, v8
v_lshlrev_b32 v1, 1, v1
buffer_store_short v8, v1, s[16:19], 0 offen
s_waitcnt vmcnt(0)
'''
kern('fin_kernel',b,32)
A('.section .rodata,"a"')
for n,vg in K:
    A(f'.p2align 6\n.amdhsa_kernel {n}\n  .amdhsa_next_free_vgpr {vg}\n  .amdhsa_next_free_sgpr 48\n  .amdhsa_accum_offset {vg}\n  .amdhsa_group_segment_fixed_size 0\n  .amdhsa_kernarg_size 104\n  .amdhsa_user_sgpr_count 2\n  .amdhsa_user_sgpr_kernarg_segment_ptr 1\n  .amdhsa_system_sgpr_workgroup_id_x 1\n.end_amdhsa_kernel')
open('concat_heads__gqa_block_cached__sliding_block_cached__decode.s','w').write('\n'.join(o)+'\n')
```

```python
H=open('concat_heads__gqa_block_cached__sliding_block_cached__decode.s.ref').read().split('; Override launch')[0]
o=[]
A=o.append
A(H.rstrip('\n'))
A('; @launch kernel=qp_kernel grid=(512,1,1) block=(256,1,1) lds=8192')
A('; @launch kernel=at_kernel grid=(1280,1,1) block=(256,1,1) lds=8448')
A('; @launch kernel=op_kernel grid=(320,1,1) block=(256,1,1) lds=9216')
A('; @launch kernel=fin_kernel grid=(5,1,1) block=(256,1,1) lds=0')
A('.amdgcn_target "amdgcn-amd-amdhsa--gfx950"\n.text')
K=[]
def kern(n,body,vg):
    A(f'.globl {n}\n.p2align 8\n.type {n},@function\n{n}:'); A(body); A(f'{n}_end:\ns_endpgm'); K.append((n,vg))
def srd(d,b,n): return f's_mov_b32 s{d}, s{b}\ns_and_b32 s{d+1}, s{b+1}, 0xffff\ns_mov_b32 s{d+2}, {n}\ns_mov_b32 s{d+3}, 0x20000\n'
WS=289409536; OACC=0x40000; OML=0x100000; OOP=0x110000
RED='''v_lshlrev_b32 v10, 5, v0
ds_write_b128 v10, v[32:35]
ds_write_b128 v10, v[36:39] offset:16
s_waitcnt lgkmcnt(0)
s_barrier
v_and_b32 v11, 7, v0
v_lshlrev_b32 v12, 2, v11
v_lshrrev_b32 v11, 3, v0
v_lshl_add_u32 v12, v11, 5, v12
v_mov_b32 v20, 0
'''+''.join(f'ds_read_b32 v{40+j%8}, v12 offset:{j*256}\n'+('s_waitcnt lgkmcnt(0)\n'+''.join(f'v_add_f32 v20, v20, v{40+k}\n' for k in range(8)) if j%8==7 else '') for j in range(32))
def fma8(src,x):
    r=''
    for k in range(4):
        r+=f'v_lshlrev_b32 v2, 16, v{src+k}\nv_and_b32 v3, 0xffff0000, v{src+k}\nv_fmac_f32 v{32+2*k}, v2, v{x}\nv_fmac_f32 v{33+2*k}, v3, v{x}\n'
    return r
Z=''.join(f'v_mov_b32 v{32+k}, 0\n' for k in range(8))
b='''s_cmp_ge_u32 s2, 512
s_cbranch_scc1 qp_kernel_end
s_lshr_b32 s3, s2, 8
s_load_dwordx2 s[4:5], s[0:1], 0
s_load_dwordx2 s[6:7], s[0:1], 24
s_load_dwordx2 s[10:11], s[0:1], 40
s_load_dwordx2 s[30:31], s[0:1], 64
s_load_dwordx2 s[8:9], s[0:1], 96
s_waitcnt lgkmcnt(0)
s_cmp_ge_u32 s2, 256
s_cselect_b32 s4, s10, s4
s_cselect_b32 s5, s11, s5
s_cselect_b32 s6, s30, s6
s_cselect_b32 s7, s31, s7
'''+srd(12,4,1280)+srd(16,6,5242880)+srd(20,8,WS)+'''s_and_b32 s24, s2, 3
s_mul_i32 s24, s24, 160
s_lshr_b32 s25, s2, 2
s_and_b32 s25, s25, 63
s_lshl_b32 s25, s25, 7
v_lshrrev_b32 v1, 3, v0
v_add_u32 v1, s24, v1
v_and_b32 v2, 7, v0
v_lshlrev_b32 v2, 4, v2
v_add_u32 v2, s25, v2
v_lshl_add_u32 v2, v1, 13, v2
v_lshlrev_b32 v3, 1, v1
'''
for i in range(5):
    b+=f'buffer_load_ushort v{24+i}, v3, s[12:15], 0 offen offset:{i*64}\nbuffer_load_dwordx4 v[{44+4*i}:{47+4*i}], v2, s[16:19], 0 offen\nv_add_u32 v2, 0x40000, v2\n'
b+=Z+'s_waitcnt vmcnt(0)\n'
for i in range(5): b+=f'v_lshlrev_b32 v23, 16, v{24+i}\n'+fma8(44+4*i,23)
b+=RED+'''s_and_b32 s24, s2, 3
s_lshl_b32 s24, s24, 14
s_lshl_b32 s3, s3, 16
s_add_u32 s24, s24, s3
s_lshl_b32 s25, s25, 1
s_add_u32 s24, s24, s25
v_lshlrev_b32 v1, 2, v0
v_cmp_gt_u32 vcc, 64, v0
s_and_saveexec_b64 s[26:27], vcc
s_cbranch_execz qp_kernel_end
buffer_store_dword v20, v1, s[20:23], s24 offen
s_waitcnt vmcnt(0)
'''
kern('qp_kernel',b,64)
b='''s_cmp_ge_u32 s2, 1280
s_cbranch_scc1 at_kernel_end
s_load_dwordx4 s[4:7], s[0:1], 8
s_load_dwordx4 s[8:11], s[0:1], 48
s_load_dwordx2 s[28:29], s[0:1], 96
s_waitcnt lgkmcnt(0)
s_lshr_b32 s24, s2, 5
s_and_b32 s25, s2, 31
s_sub_u32 s26, s2, 1024
s_lshr_b32 s27, s26, 3
s_and_b32 s26, s26, 7
s_add_u32 s26, s26, 24
s_cmp_ge_u32 s2, 1024
s_cselect_b32 s4, s8, s4
s_cselect_b32 s5, s9, s5
s_cselect_b32 s6, s10, s6
s_cselect_b32 s7, s11, s7
s_cselect_b32 s24, s27, s24
s_cselect_b32 s25, s26, s25
s_cselect_b32 s30, 0x10000, 0
'''+srd(12,4,0x4000000)+srd(16,6,0x4000000)+srd(20,28,WS)+'''s_lshl_b32 s31, s24, 9
s_add_u32 s30, s30, s31
v_and_b32 v1, 15, v0
v_lshlrev_b32 v1, 5, v1
'''
for k in range(4): b+=f's_add_u32 s31, s30, {k*0x4000}\nbuffer_load_dwordx4 v[{32+8*k}:{35+8*k}], v1, s[20:23], s31 offen\nbuffer_load_dwordx4 v[{36+8*k}:{39+8*k}], v1, s[20:23], s31 offen offset:16\n'
b+='''s_lshl_b32 s31, s24, 21
s_lshl_b32 s25, s25, 16
s_add_u32 s31, s31, s25
v_and_b32 v2, 63, v0
v_lshlrev_b32 v2, 4, v2
v_lshrrev_b32 v3, 6, v0
v_lshl_add_u32 v2, v3, 14, v2
v_add_u32 v2, s31, v2
s_mov_b32 s32, 0
s_mov_b32 s33, 4096
s_mov_b32 s34, 8192
s_mov_b32 s35, 12288
'''
for t,sr in ((64,12),(128,16)):
    for i in range(16): b+=f'buffer_load_dwordx4 v[{t+4*i}:{t+3+4*i}], v2, s[{sr}:{sr+3}], s{32+i//4} offen offset:{(i%4)*1024} nt\n'
b+='s_waitcnt vmcnt(32)\n'
for k in range(1,4): b+=''.join(f'v_add_f32 v{32+j}, v{32+j}, v{32+8*k+j}\n' for j in range(8))
b+=''.join(f'v_cvt_pk_bf16_f32 v{4+j}, v{32+2*j}, v{33+2*j}\n' for j in range(4))
b+='s_waitcnt vmcnt(16)\n'
for i in range(16):
    b+=f'v_mov_b32 v{16+i}, 0\n'+''.join(f'v_dot2_f32_bf16 v{16+i}, v{64+4*i+j}, v{4+j}, v{16+i}\n' for j in range(4))
b+='s_nop 4\n'
for r in (8,4,2,1):
    for i in range(16): b+=f'v_add_f32_dpp v{40+i}, v{16+i}, v{16+i} row_ror:{r} row_mask:0xf bank_mask:0xf\n'
    b+='s_nop 1\n'+''.join(f'v_mov_b32 v{16+i}, v{40+i}\n' for i in range(16))+'s_nop 1\n'
b+='s_mov_b32 s36, 0x3db504f3\n'
for i in range(16):
    b+=f'v_cvt_pk_bf16_f32 v40, v{16+i}, v{16+i}\nv_lshlrev_b32 v40, 16, v40\nv_mul_f32 v40, s36, v40\nv_cvt_pk_bf16_f32 v40, v40, v40\nv_lshlrev_b32 v{16+i}, 16, v40\n'
b+='v_mov_b32 v8, v16\n'+''.join(f'v_max_f32 v8, v8, v{16+i}\n' for i in range(1,16))
b+='s_mov_b32 s36, 0x3fb8aa3b\nv_mov_b32 v9, 0\n'+Z
for i in range(16): b+=f'v_sub_f32 v{16+i}, v{16+i}, v8\nv_mul_f32 v{16+i}, s36, v{16+i}\nv_exp_f32 v{16+i}, v{16+i}\ns_nop 0\nv_add_f32 v9, v9, v{16+i}\n'
b+='s_waitcnt vmcnt(0)\n'
for i in range(16): b+=fma8(128+4*i,16+i)
b+=f'''v_lshlrev_b32 v10, 5, v0
ds_write_b128 v10, v[32:35]
ds_write_b128 v10, v[36:39] offset:16
v_lshrrev_b32 v11, 4, v0
v_lshlrev_b32 v11, 3, v11
ds_write_b64 v11, v[8:9] offset:8192
s_waitcnt lgkmcnt(0)
s_barrier
v_cmp_gt_u32 vcc, 128, v0
s_and_saveexec_b64 s[26:27], vcc
s_cbranch_execz at_kernel_end
v_mov_b32 v12, 0
'''+''.join(f'ds_read_b64 v[{40+2*g}:{41+2*g}], v12 offset:{8192+8*g}\n' for g in range(16))
b+='v_lshlrev_b32 v12, 2, v0\n'+''.join(f'ds_read_b32 v{72+g}, v12 offset:{512*g}\n' for g in range(16))
b+='s_waitcnt lgkmcnt(0)\nv_mov_b32 v8, v40\n'+''.join(f'v_max_f32 v8, v8, v{40+2*g}\n' for g in range(1,16))
b+='v_mov_b32 v9, 0\nv_mov_b32 v20, 0\n'
for g in range(16): b+=f'v_sub_f32 v21, v{40+2*g}, v8\nv_mul_f32 v21, s36, v21\nv_exp_f32 v21, v21\ns_nop 0\nv_fmac_f32 v9, v21, v{41+2*g}\nv_fmac_f32 v20, v21, v{72+g}\n'
b+=f'''s_lshl_b32 s31, s2, 9
s_add_u32 s31, s31, {OACC}
buffer_store_dword v20, v12, s[20:23], s31 offen
s_lshl_b32 s31, s2, 3
s_add_u32 s31, s31, {OML}
v_mov_b32 v12, 0
v_cmp_eq_u32 vcc, 0, v0
s_and_saveexec_b64 s[26:27], vcc
s_cbranch_execz at_kernel_end
buffer_store_dwordx2 v[8:9], v12, s[20:23], s31 offen
s_waitcnt vmcnt(0)
'''
kern('at_kernel',b,192)
b='''s_cmp_ge_u32 s2, 320
s_cbranch_scc1 op_kernel_end
s_load_dwordx2 s[4:5], s[0:1], 32
s_load_dwordx2 s[6:7], s[0:1], 72
s_load_dwordx2 s[28:29], s[0:1], 96
s_waitcnt lgkmcnt(0)
s_cmp_ge_u32 s2, 160
s_cselect_b32 s4, s6, s4
s_cselect_b32 s5, s7, s5
s_cselect_b32 s3, 1, 0
s_cselect_b32 s24, 160, 0
s_cselect_b32 s38, 8, 32
s_cselect_b32 s39, 1024, 0
s_sub_u32 s24, s2, s24
s_mul_i32 s25, s24, 6554
s_lshr_b32 s25, s25, 16
s_mul_i32 s26, s25, 10
s_sub_u32 s26, s24, s26
'''+srd(16,4,5242880)+srd(20,28,WS)+'''s_lshl_b32 s27, s25, 1
v_lshrrev_b32 v1, 7, v0
v_add_u32 v1, s27, v1
v_mul_lo_u32 v1, v1, s38
v_add_u32 v1, s39, v1
v_lshlrev_b32 v2, 3, v1
v_and_b32 v3, 127, v0
v_lshlrev_b32 v3, 2, v3
v_lshl_add_u32 v3, v1, 9, v3
s_mov_b32 s36, 0x3fb8aa3b
v_mov_b32 v8, 0xff800000
v_mov_b32 v9, 0
v_mov_b32 v20, 0
'''
b=b.replace('v_lshlrev_b32 v2, 3, v1\n',f'v_lshlrev_b32 v2, 3, v1\nv_add_u32 v2, {OML}, v2\n').replace('v_lshl_add_u32 v3, v1, 9, v3\n',f'v_lshl_add_u32 v3, v1, 9, v3\nv_add_u32 v3, {OACC}, v3\n')
def comb(n,lab):
    r=''.join(f'buffer_load_dwordx2 v[{80+2*c}:{81+2*c}], v2, s[20:23], 0 offen offset:{8*c}\nbuffer_load_dword v{40+c}, v3, s[20:23], 0 offen\nv_add_u32 v3, 512, v3\n' for c in range(n))
    r+='s_waitcnt vmcnt(0)\n'+''.join(f'v_max_f32 v8, v8, v{80+2*c}\n' for c in range(n))
    for c in range(n): r+=f'v_sub_f32 v10, v{80+2*c}, v8\nv_mul_f32 v10, s36, v10\nv_exp_f32 v10, v10\ns_nop 0\nv_fmac_f32 v9, v10, v{81+2*c}\nv_fmac_f32 v20, v10, v{40+c}\n'
    return r
b+='s_cmp_eq_u32 s38, 8\ns_cbranch_scc1 op_b\n'+comb(32,0)+'s_branch op_j\nop_b:\n'+comb(8,0)+'op_j:\n'
b+='''v_rcp_f32 v9, v9
s_nop 0
v_mul_f32 v20, v20, v9
v_cvt_pk_bf16_f32 v20, v20, v20
v_lshlrev_b32 v20, 16, v20
v_lshlrev_b32 v10, 2, v0
ds_write_b32 v10, v20 offset:8192
s_waitcnt lgkmcnt(0)
s_barrier
v_lshrrev_b32 v1, 3, v0
v_lshlrev_b32 v10, 2, v1
'''+''.join(f'ds_read_b32 v{24+i}, v10 offset:{8192+128*i}\n' for i in range(8))+'''s_lshl_b32 s27, s25, 8
v_add_u32 v1, s27, v1
v_mul_u32_u24 v1, 1280, v1
v_and_b32 v2, 7, v0
v_lshlrev_b32 v2, 4, v2
v_add_u32 v2, v1, v2
s_lshl_b32 s27, s26, 7
v_add_u32 v2, s27, v2
'''
for i in range(8): b+=f'buffer_load_dwordx4 v[{44+4*i}:{47+4*i}], v2, s[16:19], 0 offen\nv_add_u32 v2, 40960, v2\n'
b+=Z+'s_waitcnt vmcnt(0) lgkmcnt(0)\n'
for i in range(8): b+=fma8(44+4*i,24+i)
b+=RED+f'''s_mul_i32 s24, s3, 16
s_add_u32 s24, s24, s25
s_mul_i32 s24, s24, 2560
s_lshl_b32 s27, s26, 8
s_add_u32 s24, s24, s27
s_add_u32 s24, s24, {OOP}
v_lshlrev_b32 v1, 2, v0
v_cmp_gt_u32 vcc, 64, v0
s_and_saveexec_b64 s[26:27], vcc
s_cbranch_execz op_kernel_end
buffer_store_dword v20, v1, s[20:23], s24 offen
s_waitcnt vmcnt(0)
'''
kern('op_kernel',b,144)
b='''s_cmp_ge_u32 s2, 5
s_cbranch_scc1 fin_kernel_end
s_load_dwordx2 s[4:5], s[0:1], 80
s_load_dwordx2 s[28:29], s[0:1], 96
s_waitcnt lgkmcnt(0)
'''+srd(16,4,2560)+srd(20,28,WS)+f'''s_lshl_b32 s3, s2, 8
v_add_u32 v1, s3, v0
v_cmp_le_u32 vcc, 640, v1
s_nop 1
v_cndmask_b32 v2, 0, 1, vcc
v_mul_u32_u24 v3, 38400, v2
v_lshl_add_u32 v3, v1, 2, v3
v_add_u32 v3, {OOP}, v3
'''+''.join(f'buffer_load_dword v{8+j}, v3, s[20:23], 0 offen offset:{0}\nv_add_u32 v3, 2560, v3\n' for j in range(16))+'s_waitcnt vmcnt(0)\n'+''.join(f'v_add_f32 v8, v8, v{8+j}\n' for j in range(1,16))+'''v_cvt_pk_bf16_f32 v8, v8, v8
v_lshlrev_b32 v1, 1, v1
buffer_store_short v8, v1, s[16:19], 0 offen
s_waitcnt vmcnt(0)
'''
kern('fin_kernel',b,32)
A('.section .rodata,"a"')
for n,vg in K:
    A(f'.p2align 6\n.amdhsa_kernel {n}\n  .amdhsa_next_free_vgpr {vg}\n  .amdhsa_next_free_sgpr 48\n  .amdhsa_accum_offset {vg}\n  .amdhsa_group_segment_fixed_size 0\n  .amdhsa_kernarg_size 104\n  .amdhsa_user_sgpr_count 2\n  .amdhsa_user_sgpr_kernarg_segment_ptr 1\n  .amdhsa_system_sgpr_workgroup_id_x 1\n.end_amdhsa_kernel')
open('concat_heads__gqa_block_cached__sliding_block_cached__decode.s','w').write('\n'.join(o)+'\n')
```

```python
H=open('concat_heads__gqa_block_cached__sliding_block_cached__decode.s.ref').read().split('; Override launch')[0]
o=[]
A=o.append
A(H.rstrip('\n'))
A('; @launch kernel=qp_kernel grid=(512,1,1) block=(256,1,1) lds=8192')
A('; @launch kernel=at_kernel grid=(1280,1,1) block=(256,1,1) lds=8448')
A('; @launch kernel=op_kernel grid=(320,1,1) block=(256,1,1) lds=9216')
A('.amdgcn_target "amdgcn-amd-amdhsa--gfx950"\n.text')
K=[]
def kern(n,body,vg):
    A(f'.globl {n}\n.p2align 8\n.type {n},@function\n{n}:'); A(body); A(f'{n}_end:\ns_endpgm'); K.append((n,vg))
def srd(d,b,n): return f's_mov_b32 s{d}, s{b}\ns_and_b32 s{d+1}, s{b+1}, 0xffff\ns_mov_b32 s{d+2}, {n}\ns_mov_b32 s{d+3}, 0x20000\n'
WS=289409536; OACC=0x40000; OML=0x100000; OOP=0x110000
RED='''v_lshlrev_b32 v10, 5, v0
ds_write_b128 v10, v[32:35]
ds_write_b128 v10, v[36:39] offset:16
s_waitcnt lgkmcnt(0)
s_barrier
v_and_b32 v11, 7, v0
v_lshlrev_b32 v12, 2, v11
v_lshrrev_b32 v11, 3, v0
v_lshl_add_u32 v12, v11, 5, v12
v_mov_b32 v20, 0
'''+''.join(f'ds_read_b32 v{40+j%8}, v12 offset:{j*256}\n'+('s_waitcnt lgkmcnt(0)\n'+''.join(f'v_add_f32 v20, v20, v{40+k}\n' for k in range(8)) if j%8==7 else '') for j in range(32))
def fma8(src,x):
    r=''
    for k in range(4):
        r+=f'v_lshlrev_b32 v2, 16, v{src+k}\nv_and_b32 v3, 0xffff0000, v{src+k}\nv_fmac_f32 v{32+2*k}, v2, v{x}\nv_fmac_f32 v{33+2*k}, v3, v{x}\n'
    return r
Z=''.join(f'v_mov_b32 v{32+k}, 0\n' for k in range(8))
b='''s_cmp_ge_u32 s2, 512
s_cbranch_scc1 qp_kernel_end
s_lshr_b32 s3, s2, 8
s_load_dwordx2 s[4:5], s[0:1], 0
s_load_dwordx2 s[6:7], s[0:1], 24
s_load_dwordx2 s[10:11], s[0:1], 40
s_load_dwordx2 s[30:31], s[0:1], 64
s_load_dwordx2 s[8:9], s[0:1], 96
s_waitcnt lgkmcnt(0)
s_cmp_ge_u32 s2, 256
s_cselect_b32 s4, s10, s4
s_cselect_b32 s5, s11, s5
s_cselect_b32 s6, s30, s6
s_cselect_b32 s7, s31, s7
'''+srd(12,4,1280)+srd(16,6,5242880)+srd(20,8,WS)+'''s_and_b32 s24, s2, 3
s_mul_i32 s24, s24, 160
s_lshr_b32 s25, s2, 2
s_and_b32 s25, s25, 63
s_lshl_b32 s25, s25, 7
v_lshrrev_b32 v1, 3, v0
v_add_u32 v1, s24, v1
v_and_b32 v2, 7, v0
v_lshlrev_b32 v2, 4, v2
v_add_u32 v2, s25, v2
v_lshl_add_u32 v2, v1, 13, v2
v_lshlrev_b32 v3, 1, v1
'''
for i in range(5):
    b+=f'buffer_load_ushort v{24+i}, v3, s[12:15], 0 offen offset:{i*64}\nbuffer_load_dwordx4 v[{44+4*i}:{47+4*i}], v2, s[16:19], 0 offen nt\nv_add_u32 v2, 0x40000, v2\n'
b+=Z+'s_waitcnt vmcnt(0)\n'
for i in range(5): b+=f'v_lshlrev_b32 v23, 16, v{24+i}\n'+fma8(44+4*i,23)
b+=RED+'''s_and_b32 s24, s2, 3
s_lshl_b32 s24, s24, 14
s_lshl_b32 s3, s3, 16
s_add_u32 s24, s24, s3
s_lshl_b32 s25, s25, 1
s_add_u32 s24, s24, s25
v_lshlrev_b32 v1, 2, v0
v_cmp_gt_u32 vcc, 64, v0
s_and_saveexec_b64 s[26:27], vcc
s_cbranch_execz qp_kernel_end
buffer_store_dword v20, v1, s[20:23], s24 offen
s_waitcnt vmcnt(0)
'''
kern('qp_kernel',b,64)
b='''s_cmp_ge_u32 s2, 1280
s_cbranch_scc1 at_kernel_end
s_load_dwordx4 s[4:7], s[0:1], 8
s_load_dwordx4 s[8:11], s[0:1], 48
s_load_dwordx2 s[28:29], s[0:1], 96
s_waitcnt lgkmcnt(0)
s_lshr_b32 s24, s2, 5
s_and_b32 s25, s2, 31
s_sub_u32 s26, s2, 1024
s_lshr_b32 s27, s26, 3
s_and_b32 s26, s26, 7
s_add_u32 s26, s26, 24
s_cmp_ge_u32 s2, 1024
s_cselect_b32 s4, s8, s4
s_cselect_b32 s5, s9, s5
s_cselect_b32 s6, s10, s6
s_cselect_b32 s7, s11, s7
s_cselect_b32 s24, s27, s24
s_cselect_b32 s25, s26, s25
s_cselect_b32 s30, 0x10000, 0
'''+srd(12,4,0x4000000)+srd(16,6,0x4000000)+srd(20,28,WS)+'''s_lshl_b32 s31, s24, 9
s_add_u32 s30, s30, s31
v_and_b32 v1, 15, v0
v_lshlrev_b32 v1, 5, v1
'''
for k in range(4): b+=f's_add_u32 s31, s30, {k*0x4000}\nbuffer_load_dwordx4 v[{32+8*k}:{35+8*k}], v1, s[20:23], s31 offen\nbuffer_load_dwordx4 v[{36+8*k}:{39+8*k}], v1, s[20:23], s31 offen offset:16\n'
b+='''s_lshl_b32 s31, s24, 21
s_lshl_b32 s25, s25, 16
s_add_u32 s31, s31, s25
v_and_b32 v2, 63, v0
v_lshlrev_b32 v2, 4, v2
v_lshrrev_b32 v3, 6, v0
v_lshl_add_u32 v2, v3, 14, v2
v_add_u32 v2, s31, v2
s_mov_b32 s32, 0
s_mov_b32 s33, 4096
s_mov_b32 s34, 8192
s_mov_b32 s35, 12288
'''
for t,sr in ((64,12),(128,16)):
    for i in range(16): b+=f'buffer_load_dwordx4 v[{t+4*i}:{t+3+4*i}], v2, s[{sr}:{sr+3}], s{32+i//4} offen offset:{(i%4)*1024} nt\n'
b+='s_waitcnt vmcnt(32)\n'
for k in range(1,4): b+=''.join(f'v_add_f32 v{32+j}, v{32+j}, v{32+8*k+j}\n' for j in range(8))
b+=''.join(f'v_cvt_pk_bf16_f32 v{4+j}, v{32+2*j}, v{33+2*j}\n' for j in range(4))
b+='s_waitcnt vmcnt(16)\n'
for i in range(16):
    b+=f'v_mov_b32 v{16+i}, 0\n'+''.join(f'v_dot2_f32_bf16 v{16+i}, v{64+4*i+j}, v{4+j}, v{16+i}\n' for j in range(4))
b+='s_nop 4\n'
for r in (8,4,2,1):
    for i in range(16): b+=f'v_add_f32_dpp v{40+i}, v{16+i}, v{16+i} row_ror:{r} row_mask:0xf bank_mask:0xf\n'
    b+='s_nop 1\n'+''.join(f'v_mov_b32 v{16+i}, v{40+i}\n' for i in range(16))+'s_nop 1\n'
b+='s_mov_b32 s36, 0x3db504f3\n'
for i in range(16):
    b+=f'v_cvt_pk_bf16_f32 v40, v{16+i}, v{16+i}\nv_lshlrev_b32 v40, 16, v40\nv_mul_f32 v40, s36, v40\nv_cvt_pk_bf16_f32 v40, v40, v40\nv_lshlrev_b32 v{16+i}, 16, v40\n'
b+='v_mov_b32 v8, v16\n'+''.join(f'v_max_f32 v8, v8, v{16+i}\n' for i in range(1,16))
b+='s_mov_b32 s36, 0x3fb8aa3b\nv_mov_b32 v9, 0\n'+Z
for i in range(16): b+=f'v_sub_f32 v{16+i}, v{16+i}, v8\nv_mul_f32 v{16+i}, s36, v{16+i}\nv_exp_f32 v{16+i}, v{16+i}\ns_nop 0\nv_add_f32 v9, v9, v{16+i}\n'
b+='s_waitcnt vmcnt(0)\n'
for i in range(16): b+=fma8(128+4*i,16+i)
b+=f'''v_lshlrev_b32 v10, 5, v0
ds_write_b128 v10, v[32:35]
ds_write_b128 v10, v[36:39] offset:16
v_lshrrev_b32 v11, 4, v0
v_lshlrev_b32 v11, 3, v11
ds_write_b64 v11, v[8:9] offset:8192
s_waitcnt lgkmcnt(0)
s_barrier
v_cmp_gt_u32 vcc, 128, v0
s_and_saveexec_b64 s[26:27], vcc
s_cbranch_execz at_kernel_end
v_mov_b32 v12, 0
'''+''.join(f'ds_read_b64 v[{40+2*g}:{41+2*g}], v12 offset:{8192+8*g}\n' for g in range(16))
b+='v_lshlrev_b32 v12, 2, v0\n'+''.join(f'ds_read_b32 v{72+g}, v12 offset:{512*g}\n' for g in range(16))
b+='s_waitcnt lgkmcnt(0)\nv_mov_b32 v8, v40\n'+''.join(f'v_max_f32 v8, v8, v{40+2*g}\n' for g in range(1,16))
b+='v_mov_b32 v9, 0\nv_mov_b32 v20, 0\n'
for g in range(16): b+=f'v_sub_f32 v21, v{40+2*g}, v8\nv_mul_f32 v21, s36, v21\nv_exp_f32 v21, v21\ns_nop 0\nv_fmac_f32 v9, v21, v{41+2*g}\nv_fmac_f32 v20, v21, v{72+g}\n'
b+=f'''s_lshl_b32 s31, s2, 9
s_add_u32 s31, s31, {OACC}
buffer_store_dword v20, v12, s[20:23], s31 offen
s_lshl_b32 s31, s2, 3
s_add_u32 s31, s31, {OML}
v_mov_b32 v12, 0
v_cmp_eq_u32 vcc, 0, v0
s_and_saveexec_b64 s[26:27], vcc
s_cbranch_execz at_kernel_end
buffer_store_dwordx2 v[8:9], v12, s[20:23], s31 offen
s_waitcnt vmcnt(0)
'''
kern('at_kernel',b,192)
b='''s_cmp_ge_u32 s2, 320
s_cbranch_scc1 op_kernel_end
s_load_dwordx2 s[4:5], s[0:1], 32
s_load_dwordx2 s[6:7], s[0:1], 72
s_load_dwordx2 s[28:29], s[0:1], 96
s_waitcnt lgkmcnt(0)
s_cmp_ge_u32 s2, 160
s_cselect_b32 s4, s6, s4
s_cselect_b32 s5, s7, s5
s_cselect_b32 s3, 1, 0
s_cselect_b32 s24, 160, 0
s_cselect_b32 s38, 8, 32
s_cselect_b32 s39, 1024, 0
s_sub_u32 s24, s2, s24
s_mul_i32 s25, s24, 6554
s_lshr_b32 s25, s25, 16
s_mul_i32 s26, s25, 10
s_sub_u32 s26, s24, s26
'''+srd(16,4,5242880)+srd(20,28,WS)+'''s_lshl_b32 s27, s25, 1
v_lshrrev_b32 v1, 7, v0
v_add_u32 v1, s27, v1
v_mul_lo_u32 v1, v1, s38
v_add_u32 v1, s39, v1
v_lshlrev_b32 v2, 3, v1
v_and_b32 v3, 127, v0
v_lshlrev_b32 v3, 2, v3
v_lshl_add_u32 v3, v1, 9, v3
s_mov_b32 s36, 0x3fb8aa3b
v_mov_b32 v8, 0xff800000
v_mov_b32 v9, 0
v_mov_b32 v20, 0
'''
b=b.replace('v_lshlrev_b32 v2, 3, v1\n',f'v_lshlrev_b32 v2, 3, v1\nv_add_u32 v2, {OML}, v2\n').replace('v_lshl_add_u32 v3, v1, 9, v3\n',f'v_lshl_add_u32 v3, v1, 9, v3\nv_add_u32 v3, {OACC}, v3\n')
def comb(n,lab):
    r=''.join(f'buffer_load_dwordx2 v[{80+2*c}:{81+2*c}], v2, s[20:23], 0 offen offset:{8*c}\nbuffer_load_dword v{40+c}, v3, s[20:23], 0 offen\nv_add_u32 v3, 512, v3\n' for c in range(n))
    r+='s_waitcnt vmcnt(0)\n'+''.join(f'v_max_f32 v8, v8, v{80+2*c}\n' for c in range(n))
    for c in range(n): r+=f'v_sub_f32 v10, v{80+2*c}, v8\nv_mul_f32 v10, s36, v10\nv_exp_f32 v10, v10\ns_nop 0\nv_fmac_f32 v9, v10, v{81+2*c}\nv_fmac_f32 v20, v10, v{40+c}\n'
    return r
b+='s_cmp_eq_u32 s38, 8\ns_cbranch_scc1 op_b\n'+comb(32,0)+'s_branch op_j\nop_b:\n'+comb(8,0)+'op_j:\n'
b+='''v_rcp_f32 v9, v9
s_nop 0
v_mul_f32 v20, v20, v9
v_cvt_pk_bf16_f32 v20, v20, v20
v_lshlrev_b32 v20, 16, v20
v_lshlrev_b32 v10, 2, v0
ds_write_b32 v10, v20 offset:8192
s_waitcnt lgkmcnt(0)
s_barrier
v_lshrrev_b32 v1, 3, v0
v_lshlrev_b32 v10, 2, v1
'''+''.join(f'ds_read_b32 v{24+i}, v10 offset:{8192+128*i}\n' for i in range(8))+'''s_lshl_b32 s27, s25, 8
v_add_u32 v1, s27, v1
v_mul_u32_u24 v1, 1280, v1
v_and_b32 v2, 7, v0
v_lshlrev_b32 v2, 4, v2
v_add_u32 v2, v1, v2
s_lshl_b32 s27, s26, 7
v_add_u32 v2, s27, v2
'''
for i in range(8): b+=f'buffer_load_dwordx4 v[{44+4*i}:{47+4*i}], v2, s[16:19], 0 offen nt\nv_add_u32 v2, 40960, v2\n'
b+=Z+'s_waitcnt vmcnt(0) lgkmcnt(0)\n'
for i in range(8): b+=fma8(44+4*i,24+i)
b+=RED+f'''s_mul_i32 s24, s3, 16
s_add_u32 s24, s24, s25
s_mul_i32 s24, s24, 2560
s_lshl_b32 s27, s26, 8
s_add_u32 s24, s24, s27
s_add_u32 s24, s24, {OOP}
v_lshlrev_b32 v1, 2, v0
v_cmp_gt_u32 vcc, 64, v0
s_and_saveexec_b64 s[26:27], vcc
s_cbranch_execz op_kernel_end
buffer_store_dword v20, v1, s[20:23], s24 offen sc0 sc1
s_waitcnt vmcnt(0)
s_mul_i32 s40, s3, 10
s_lshl_b32 s41, s26, 0
'''
b=b.replace('s_and_saveexec_b64 s[26:27], vcc\ns_cbranch_execz op_kernel_end','s_mov_b32 s42, s26\ns_and_saveexec_b64 s[44:45], vcc\ns_cbranch_execz op_kernel_end')
b=b.replace('s_lshl_b32 s41, s26, 0\n','')
b=b.replace('s_load_dwordx2 s[28:29], s[0:1], 96\n','s_load_dwordx2 s[28:29], s[0:1], 96\ns_load_dwordx4 s[8:11], s[0:1], 80\n')
b+=srd(12,10,256)+srd(48,8,2560)+f'''s_add_u32 s40, s40, s42
s_lshl_b32 s40, s40, 2
v_mov_b32 v5, 1
v_mov_b32 v6, s40
v_cmp_eq_u32 vcc, 0, v0
s_and_saveexec_b64 s[44:45], vcc
buffer_atomic_add v5, v6, s[12:15], 0 offen sc0 sc1
s_waitcnt vmcnt(0)
s_mov_b64 exec, s[44:45]
s_nop 4
v_readfirstlane_b32 s41, v5
s_nop 4
s_cmp_lg_u32 s41, 15
s_cbranch_scc1 op_kernel_end
s_mul_i32 s24, s3, 40960
s_lshl_b32 s27, s42, 8
s_add_u32 s24, s24, s27
s_add_u32 s24, s24, {OOP}
'''+''.join(f'buffer_load_dword v{40+j}, v1, s[20:23], s24 offen sc0 sc1\ns_add_u32 s24, s24, 2560\n' for j in range(16))+'s_waitcnt vmcnt(0)\n'+''.join(f'v_add_f32 v40, v40, v{40+j}\n' for j in range(1,16))+'''v_cvt_pk_bf16_f32 v8, v40, v40
s_mul_i32 s24, s3, 1280
s_lshl_b32 s27, s42, 7
s_add_u32 s24, s24, s27
v_lshlrev_b32 v1, 1, v0
buffer_store_short v8, v1, s[48:51], s24 offen
s_waitcnt vmcnt(0)
'''
kern('op_kernel',b,144)
A('.section .rodata,"a"')
for n,vg in K:
    A(f'.p2align 6\n.amdhsa_kernel {n}\n  .amdhsa_next_free_vgpr {vg}\n  .amdhsa_next_free_sgpr 56\n  .amdhsa_accum_offset {vg}\n  .amdhsa_group_segment_fixed_size 0\n  .amdhsa_kernarg_size 104\n  .amdhsa_user_sgpr_count 2\n  .amdhsa_user_sgpr_kernarg_segment_ptr 1\n  .amdhsa_system_sgpr_workgroup_id_x 1\n.end_amdhsa_kernel')
open('concat_heads__gqa_block_cached__sliding_block_cached__decode.s','w').write('\n'.join(o)+'\n')
```

```python
H=open('concat_heads__gqa_block_cached__sliding_block_cached__decode.s.ref').read().split('; Override launch')[0]
o=[]
A=o.append
A(H.rstrip('\n'))
A('; @launch kernel=qp_kernel grid=(512,1,1) block=(256,1,1) lds=8192')
A('; @launch kernel=at_kernel grid=(2560,1,1) block=(256,1,1) lds=8448')
A('; @launch kernel=op_kernel grid=(320,1,1) block=(256,1,1) lds=9216')
A('.amdgcn_target "amdgcn-amd-amdhsa--gfx950"\n.text')
K=[]
def kern(n,body,vg):
    A(f'.globl {n}\n.p2align 8\n.type {n},@function\n{n}:'); A(body); A(f'{n}_end:\ns_endpgm'); K.append((n,vg))
def srd(d,b,n): return f's_mov_b32 s{d}, s{b}\ns_and_b32 s{d+1}, s{b+1}, 0xffff\ns_mov_b32 s{d+2}, {n}\ns_mov_b32 s{d+3}, 0x20000\n'
WS=289409536; OACC=0x40000; OML=0x200000; OOP=0x210000
RED='''v_lshlrev_b32 v10, 5, v0
ds_write_b128 v10, v[32:35]
ds_write_b128 v10, v[36:39] offset:16
s_waitcnt lgkmcnt(0)
s_barrier
v_and_b32 v11, 7, v0
v_lshlrev_b32 v12, 2, v11
v_lshrrev_b32 v11, 3, v0
v_lshl_add_u32 v12, v11, 5, v12
v_mov_b32 v20, 0
'''+''.join(f'ds_read_b32 v{40+j%8}, v12 offset:{j*256}\n'+('s_waitcnt lgkmcnt(0)\n'+''.join(f'v_add_f32 v20, v20, v{40+k}\n' for k in range(8)) if j%8==7 else '') for j in range(32))
def fma8(src,x):
    r=''
    for k in range(4):
        r+=f'v_lshlrev_b32 v2, 16, v{src+k}\nv_and_b32 v3, 0xffff0000, v{src+k}\nv_fmac_f32 v{32+2*k}, v2, v{x}\nv_fmac_f32 v{33+2*k}, v3, v{x}\n'
    return r
Z=''.join(f'v_mov_b32 v{32+k}, 0\n' for k in range(8))
b='''s_cmp_ge_u32 s2, 512
s_cbranch_scc1 qp_kernel_end
s_lshr_b32 s3, s2, 8
s_load_dwordx2 s[4:5], s[0:1], 0
s_load_dwordx2 s[6:7], s[0:1], 24
s_load_dwordx2 s[10:11], s[0:1], 40
s_load_dwordx2 s[30:31], s[0:1], 64
s_load_dwordx2 s[8:9], s[0:1], 96
s_waitcnt lgkmcnt(0)
s_cmp_ge_u32 s2, 256
s_cselect_b32 s4, s10, s4
s_cselect_b32 s5, s11, s5
s_cselect_b32 s6, s30, s6
s_cselect_b32 s7, s31, s7
'''+srd(12,4,1280)+srd(16,6,5242880)+srd(20,8,WS)+'''s_and_b32 s24, s2, 3
s_mul_i32 s24, s24, 160
s_lshr_b32 s25, s2, 2
s_and_b32 s25, s25, 63
s_lshl_b32 s25, s25, 7
v_lshrrev_b32 v1, 3, v0
v_add_u32 v1, s24, v1
v_and_b32 v2, 7, v0
v_lshlrev_b32 v2, 4, v2
v_add_u32 v2, s25, v2
v_lshl_add_u32 v2, v1, 13, v2
v_lshlrev_b32 v3, 1, v1
'''
for i in range(5):
    b+=f'buffer_load_ushort v{24+i}, v3, s[12:15], 0 offen offset:{i*64}\nbuffer_load_dwordx4 v[{44+4*i}:{47+4*i}], v2, s[16:19], 0 offen nt\nv_add_u32 v2, 0x40000, v2\n'
b+=Z+'s_waitcnt vmcnt(0)\n'
for i in range(5): b+=f'v_lshlrev_b32 v23, 16, v{24+i}\n'+fma8(44+4*i,23)
b+=RED+'''s_and_b32 s24, s2, 3
s_lshl_b32 s24, s24, 14
s_lshl_b32 s3, s3, 16
s_add_u32 s24, s24, s3
s_lshl_b32 s25, s25, 1
s_add_u32 s24, s24, s25
v_lshlrev_b32 v1, 2, v0
v_cmp_gt_u32 vcc, 64, v0
s_and_saveexec_b64 s[26:27], vcc
s_cbranch_execz qp_kernel_end
buffer_store_dword v20, v1, s[20:23], s24 offen
s_waitcnt vmcnt(0)
'''
kern('qp_kernel',b,64)
b='''s_cmp_ge_u32 s2, 2560
s_cbranch_scc1 at_kernel_end
s_load_dwordx4 s[4:7], s[0:1], 8
s_load_dwordx4 s[8:11], s[0:1], 48
s_load_dwordx2 s[28:29], s[0:1], 96
s_waitcnt lgkmcnt(0)
s_lshr_b32 s24, s2, 6
s_and_b32 s25, s2, 63
s_sub_u32 s26, s2, 2048
s_lshr_b32 s27, s26, 4
s_and_b32 s26, s26, 15
s_add_u32 s26, s26, 48
s_cmp_ge_u32 s2, 2048
s_cselect_b32 s4, s8, s4
s_cselect_b32 s5, s9, s5
s_cselect_b32 s6, s10, s6
s_cselect_b32 s7, s11, s7
s_cselect_b32 s24, s27, s24
s_cselect_b32 s25, s26, s25
s_cselect_b32 s30, 0x10000, 0
'''+srd(12,4,0x4000000)+srd(16,6,0x4000000)+srd(20,28,WS)+'''s_lshl_b32 s31, s24, 9
s_add_u32 s30, s30, s31
v_and_b32 v1, 15, v0
v_lshlrev_b32 v1, 5, v1
'''
for k in range(4): b+=f's_add_u32 s31, s30, {k*0x4000}\nbuffer_load_dwordx4 v[{32+8*k}:{35+8*k}], v1, s[20:23], s31 offen\nbuffer_load_dwordx4 v[{36+8*k}:{39+8*k}], v1, s[20:23], s31 offen offset:16\n'
b+='''s_lshl_b32 s31, s24, 21
s_lshl_b32 s25, s25, 15
s_add_u32 s31, s31, s25
v_and_b32 v2, 63, v0
v_lshlrev_b32 v2, 4, v2
v_lshrrev_b32 v3, 6, v0
v_lshl_add_u32 v2, v3, 13, v2
v_add_u32 v2, s31, v2
s_mov_b32 s32, 0
s_mov_b32 s33, 4096
s_mov_b32 s34, 8192
s_mov_b32 s35, 12288
'''
for t,sr in ((64,12),(96,16)):
    for i in range(8): b+=f'buffer_load_dwordx4 v[{t+4*i}:{t+3+4*i}], v2, s[{sr}:{sr+3}], s{32+i//4} offen offset:{(i%4)*1024} nt\n'
b+='s_waitcnt vmcnt(16)\n'
for k in range(1,4): b+=''.join(f'v_add_f32 v{32+j}, v{32+j}, v{32+8*k+j}\n' for j in range(8))
b+=''.join(f'v_cvt_pk_bf16_f32 v{4+j}, v{32+2*j}, v{33+2*j}\n' for j in range(4))
b+='s_waitcnt vmcnt(8)\n'
for i in range(8):
    b+=f'v_mov_b32 v{16+i}, 0\n'+''.join(f'v_dot2_f32_bf16 v{16+i}, v{64+4*i+j}, v{4+j}, v{16+i}\n' for j in range(4))
b+='s_nop 4\n'
for r in (8,4,2,1):
    for i in range(8): b+=f'v_add_f32_dpp v{40+i}, v{16+i}, v{16+i} row_ror:{r} row_mask:0xf bank_mask:0xf\n'
    b+='s_nop 1\n'+''.join(f'v_mov_b32 v{16+i}, v{40+i}\n' for i in range(8))+'s_nop 1\n'
b+='s_mov_b32 s36, 0x3db504f3\n'
for i in range(8):
    b+=f'v_cvt_pk_bf16_f32 v40, v{16+i}, v{16+i}\nv_lshlrev_b32 v40, 16, v40\nv_mul_f32 v40, s36, v40\nv_cvt_pk_bf16_f32 v40, v40, v40\nv_lshlrev_b32 v{16+i}, 16, v40\n'
b+='v_mov_b32 v8, v16\n'+''.join(f'v_max_f32 v8, v8, v{16+i}\n' for i in range(1,8))
b+='s_mov_b32 s36, 0x3fb8aa3b\nv_mov_b32 v9, 0\n'+Z
for i in range(8): b+=f'v_sub_f32 v{16+i}, v{16+i}, v8\nv_mul_f32 v{16+i}, s36, v{16+i}\nv_exp_f32 v{16+i}, v{16+i}\ns_nop 0\nv_add_f32 v9, v9, v{16+i}\n'
b+='s_waitcnt vmcnt(0)\n'
for i in range(8): b+=fma8(96+4*i,16+i)
b+=f'''v_lshlrev_b32 v10, 5, v0
ds_write_b128 v10, v[32:35]
ds_write_b128 v10, v[36:39] offset:16
v_lshrrev_b32 v11, 4, v0
v_lshlrev_b32 v11, 3, v11
ds_write_b64 v11, v[8:9] offset:8192
s_waitcnt lgkmcnt(0)
s_barrier
v_cmp_gt_u32 vcc, 128, v0
s_and_saveexec_b64 s[26:27], vcc
s_cbranch_execz at_kernel_end
v_mov_b32 v12, 0
'''+''.join(f'ds_read_b64 v[{40+2*g}:{41+2*g}], v12 offset:{8192+8*g}\n' for g in range(16))
b+='v_lshlrev_b32 v12, 2, v0\n'+''.join(f'ds_read_b32 v{72+g}, v12 offset:{512*g}\n' for g in range(16))
b+='s_waitcnt lgkmcnt(0)\nv_mov_b32 v8, v40\n'+''.join(f'v_max_f32 v8, v8, v{40+2*g}\n' for g in range(1,16))
b+='v_mov_b32 v9, 0\nv_mov_b32 v20, 0\n'
for g in range(16): b+=f'v_sub_f32 v21, v{40+2*g}, v8\nv_mul_f32 v21, s36, v21\nv_exp_f32 v21, v21\ns_nop 0\nv_fmac_f32 v9, v21, v{41+2*g}\nv_fmac_f32 v20, v21, v{72+g}\n'
b+=f'''s_lshl_b32 s31, s2, 9
s_add_u32 s31, s31, {OACC}
buffer_store_dword v20, v12, s[20:23], s31 offen
s_lshl_b32 s31, s2, 3
s_add_u32 s31, s31, {OML}
v_mov_b32 v12, 0
v_cmp_eq_u32 vcc, 0, v0
s_and_saveexec_b64 s[26:27], vcc
s_cbranch_execz at_kernel_end
buffer_store_dwordx2 v[8:9], v12, s[20:23], s31 offen
s_waitcnt vmcnt(0)
'''
kern('at_kernel',b,128)
b='''s_cmp_ge_u32 s2, 320
s_cbranch_scc1 op_kernel_end
s_load_dwordx2 s[4:5], s[0:1], 32
s_load_dwordx2 s[6:7], s[0:1], 72
s_load_dwordx2 s[28:29], s[0:1], 96
s_waitcnt lgkmcnt(0)
s_cmp_ge_u32 s2, 160
s_cselect_b32 s4, s6, s4
s_cselect_b32 s5, s7, s5
s_cselect_b32 s3, 1, 0
s_cselect_b32 s24, 160, 0
s_cselect_b32 s38, 16, 64
s_cselect_b32 s39, 2048, 0
s_sub_u32 s24, s2, s24
s_mul_i32 s25, s24, 6554
s_lshr_b32 s25, s25, 16
s_mul_i32 s26, s25, 10
s_sub_u32 s26, s24, s26
'''+srd(16,4,5242880)+srd(20,28,WS)+'''s_lshl_b32 s27, s25, 1
v_lshrrev_b32 v1, 7, v0
v_add_u32 v1, s27, v1
v_mul_lo_u32 v1, v1, s38
v_add_u32 v1, s39, v1
v_lshlrev_b32 v2, 3, v1
v_and_b32 v3, 127, v0
v_lshlrev_b32 v3, 2, v3
v_lshl_add_u32 v3, v1, 9, v3
s_mov_b32 s36, 0x3fb8aa3b
v_mov_b32 v8, 0xff800000
v_mov_b32 v9, 0
v_mov_b32 v20, 0
'''
b=b.replace('v_lshlrev_b32 v2, 3, v1\n',f'v_lshlrev_b32 v2, 3, v1\nv_add_u32 v2, {OML}, v2\n').replace('v_lshl_add_u32 v3, v1, 9, v3\n',f'v_lshl_add_u32 v3, v1, 9, v3\nv_add_u32 v3, {OACC}, v3\n')
def comb(n,lab):
    r=''.join(f'buffer_load_dwordx2 v[{112+2*c}:{113+2*c}], v2, s[20:23], 0 offen offset:{8*c}\nbuffer_load_dword v{40+c}, v3, s[20:23], 0 offen\nv_add_u32 v3, 512, v3\n' for c in range(n))
    r+='s_waitcnt vmcnt(0)\n'+''.join(f'v_max_f32 v8, v8, v{112+2*c}\n' for c in range(n))
    for c in range(n): r+=f'v_sub_f32 v10, v{112+2*c}, v8\nv_mul_f32 v10, s36, v10\nv_exp_f32 v10, v10\ns_nop 0\nv_fmac_f32 v9, v10, v{113+2*c}\nv_fmac_f32 v20, v10, v{40+c}\n'
    return r
b+='s_cmp_eq_u32 s38, 16\ns_cbranch_scc1 op_b\n'+comb(64,0)+'s_branch op_j\nop_b:\n'+comb(16,0)+'op_j:\n'
b+='''v_rcp_f32 v9, v9
s_nop 0
v_mul_f32 v20, v20, v9
v_cvt_pk_bf16_f32 v20, v20, v20
v_lshlrev_b32 v20, 16, v20
v_lshlrev_b32 v10, 2, v0
ds_write_b32 v10, v20 offset:8192
s_waitcnt lgkmcnt(0)
s_barrier
v_lshrrev_b32 v1, 3, v0
v_lshlrev_b32 v10, 2, v1
'''+''.join(f'ds_read_b32 v{24+i}, v10 offset:{8192+128*i}\n' for i in range(8))+'''s_lshl_b32 s27, s25, 8
v_add_u32 v1, s27, v1
v_mul_u32_u24 v1, 1280, v1
v_and_b32 v2, 7, v0
v_lshlrev_b32 v2, 4, v2
v_add_u32 v2, v1, v2
s_lshl_b32 s27, s26, 7
v_add_u32 v2, s27, v2
'''
for i in range(8): b+=f'buffer_load_dwordx4 v[{44+4*i}:{47+4*i}], v2, s[16:19], 0 offen nt\nv_add_u32 v2, 40960, v2\n'
b+=Z+'s_waitcnt vmcnt(0) lgkmcnt(0)\n'
for i in range(8): b+=fma8(44+4*i,24+i)
b+=RED+f'''s_mul_i32 s24, s3, 16
s_add_u32 s24, s24, s25
s_mul_i32 s24, s24, 2560
s_lshl_b32 s27, s26, 8
s_add_u32 s24, s24, s27
s_add_u32 s24, s24, {OOP}
v_lshlrev_b32 v1, 2, v0
v_cmp_gt_u32 vcc, 64, v0
s_and_saveexec_b64 s[26:27], vcc
s_cbranch_execz op_kernel_end
buffer_store_dword v20, v1, s[20:23], s24 offen sc0 sc1
s_waitcnt vmcnt(0)
s_mul_i32 s40, s3, 10
s_lshl_b32 s41, s26, 0
'''
b=b.replace('s_and_saveexec_b64 s[26:27], vcc\ns_cbranch_execz op_kernel_end','s_mov_b32 s42, s26\ns_and_saveexec_b64 s[44:45], vcc\ns_cbranch_execz op_kernel_end')
b=b.replace('s_lshl_b32 s41, s26, 0\n','')
b=b.replace('s_load_dwordx2 s[28:29], s[0:1], 96\n','s_load_dwordx2 s[28:29], s[0:1], 96\ns_load_dwordx4 s[8:11], s[0:1], 80\n')
b+=srd(12,10,256)+srd(48,8,2560)+f'''s_add_u32 s40, s40, s42
s_lshl_b32 s40, s40, 2
v_mov_b32 v5, 1
v_mov_b32 v6, s40
v_cmp_eq_u32 vcc, 0, v0
s_and_saveexec_b64 s[44:45], vcc
buffer_atomic_add v5, v6, s[12:15], 0 offen sc0 sc1
s_waitcnt vmcnt(0)
s_mov_b64 exec, s[44:45]
s_nop 4
v_readfirstlane_b32 s41, v5
s_nop 4
s_cmp_lg_u32 s41, 15
s_cbranch_scc1 op_kernel_end
s_mul_i32 s24, s3, 40960
s_lshl_b32 s27, s42, 8
s_add_u32 s24, s24, s27
s_add_u32 s24, s24, {OOP}
'''+''.join(f'buffer_load_dword v{40+j}, v1, s[20:23], s24 offen sc0 sc1\ns_add_u32 s24, s24, 2560\n' for j in range(16))+'s_waitcnt vmcnt(0)\n'+''.join(f'v_add_f32 v40, v40, v{40+j}\n' for j in range(1,16))+'''v_cvt_pk_bf16_f32 v8, v40, v40
s_mul_i32 s24, s3, 1280
s_lshl_b32 s27, s42, 7
s_add_u32 s24, s24, s27
v_lshlrev_b32 v1, 1, v0
buffer_store_short v8, v1, s[48:51], s24 offen
s_waitcnt vmcnt(0)
'''
kern('op_kernel',b,240)
A('.section .rodata,"a"')
for n,vg in K:
    A(f'.p2align 6\n.amdhsa_kernel {n}\n  .amdhsa_next_free_vgpr {vg}\n  .amdhsa_next_free_sgpr 56\n  .amdhsa_accum_offset {vg}\n  .amdhsa_group_segment_fixed_size 0\n  .amdhsa_kernarg_size 104\n  .amdhsa_user_sgpr_count 2\n  .amdhsa_user_sgpr_kernarg_segment_ptr 1\n  .amdhsa_system_sgpr_workgroup_id_x 1\n.end_amdhsa_kernel')
open('concat_heads__gqa_block_cached__sliding_block_cached__decode.s','w').write('\n'.join(o)+'\n')
```

```python
H=open('concat_heads__gqa_block_cached__sliding_block_cached__decode.s.ref').read().split('; Override launch')[0]
o=[]
A=o.append
A(H.rstrip('\n'))
A('; @launch kernel=qp_kernel grid=(512,1,1) block=(256,1,1) lds=8192')
A('; @launch kernel=at_kernel grid=(2560,1,1) block=(256,1,1) lds=8448')
A('; @launch kernel=op_kernel grid=(320,1,1) block=(256,1,1) lds=9216')
A('.amdgcn_target "amdgcn-amd-amdhsa--gfx950"\n.text')
K=[]
def kern(n,body,vg):
    A(f'.globl {n}\n.p2align 8\n.type {n},@function\n{n}:'); A(body); A(f'{n}_end:\ns_endpgm'); K.append((n,vg))
def srd(d,b,n): return f's_mov_b32 s{d}, s{b}\ns_and_b32 s{d+1}, s{b+1}, 0xffff\ns_mov_b32 s{d+2}, {n}\ns_mov_b32 s{d+3}, 0x20000\n'
WS=289409536; OACC=0x40000; OML=0x200000; OOP=0x210000
RED='''v_lshlrev_b32 v10, 5, v0
ds_write_b128 v10, v[32:35]
ds_write_b128 v10, v[36:39] offset:16
s_waitcnt lgkmcnt(0)
s_barrier
v_and_b32 v11, 7, v0
v_lshlrev_b32 v12, 2, v11
v_lshrrev_b32 v11, 3, v0
v_lshl_add_u32 v12, v11, 5, v12
v_mov_b32 v20, 0
'''+''.join(f'ds_read_b32 v{40+j%8}, v12 offset:{j*256}\n'+('s_waitcnt lgkmcnt(0)\n'+''.join(f'v_add_f32 v20, v20, v{40+k}\n' for k in range(8)) if j%8==7 else '') for j in range(32))
def fma8(src,x):
    r=''
    for k in range(4):
        r+=f'v_lshlrev_b32 v2, 16, v{src+k}\nv_and_b32 v3, 0xffff0000, v{src+k}\nv_fmac_f32 v{32+2*k}, v2, v{x}\nv_fmac_f32 v{33+2*k}, v3, v{x}\n'
    return r
Z=''.join(f'v_mov_b32 v{32+k}, 0\n' for k in range(8))
b='''s_cmp_ge_u32 s2, 512
s_cbranch_scc1 qp_kernel_end
s_lshr_b32 s3, s2, 8
s_load_dwordx2 s[4:5], s[0:1], 0
s_load_dwordx2 s[6:7], s[0:1], 24
s_load_dwordx2 s[10:11], s[0:1], 40
s_load_dwordx2 s[30:31], s[0:1], 64
s_load_dwordx2 s[8:9], s[0:1], 96
s_waitcnt lgkmcnt(0)
s_cmp_ge_u32 s2, 256
s_cselect_b32 s4, s10, s4
s_cselect_b32 s5, s11, s5
s_cselect_b32 s6, s30, s6
s_cselect_b32 s7, s31, s7
'''+srd(12,4,1280)+srd(16,6,5242880)+srd(20,8,WS)+'''s_and_b32 s24, s2, 3
s_mul_i32 s24, s24, 160
s_lshr_b32 s25, s2, 2
s_and_b32 s25, s25, 63
s_lshl_b32 s25, s25, 7
v_lshrrev_b32 v1, 3, v0
v_add_u32 v1, s24, v1
v_and_b32 v2, 7, v0
v_lshlrev_b32 v2, 4, v2
v_add_u32 v2, s25, v2
v_lshl_add_u32 v2, v1, 13, v2
v_lshlrev_b32 v3, 1, v1
'''
for i in range(5):
    b+=f'buffer_load_ushort v{24+i}, v3, s[12:15], 0 offen offset:{i*64}\nbuffer_load_dwordx4 v[{44+4*i}:{47+4*i}], v2, s[16:19], 0 offen nt\nv_add_u32 v2, 0x40000, v2\n'
b+=Z+'s_waitcnt vmcnt(0)\n'
for i in range(5): b+=f'v_lshlrev_b32 v23, 16, v{24+i}\n'+fma8(44+4*i,23)
b+=RED+'''s_and_b32 s24, s2, 3
s_lshl_b32 s24, s24, 14
s_lshl_b32 s3, s3, 16
s_add_u32 s24, s24, s3
s_lshl_b32 s25, s25, 1
s_add_u32 s24, s24, s25
v_lshlrev_b32 v1, 2, v0
v_cmp_gt_u32 vcc, 64, v0
s_and_saveexec_b64 s[26:27], vcc
s_cbranch_execz qp_kernel_end
buffer_store_dword v20, v1, s[20:23], s24 offen
s_waitcnt vmcnt(0)
'''
kern('qp_kernel',b,64)
b='''s_cmp_ge_u32 s2, 2560
s_cbranch_scc1 at_kernel_end
s_load_dwordx4 s[4:7], s[0:1], 8
s_load_dwordx4 s[8:11], s[0:1], 48
s_load_dwordx2 s[28:29], s[0:1], 96
s_waitcnt lgkmcnt(0)
s_lshr_b32 s24, s2, 6
s_and_b32 s25, s2, 63
s_sub_u32 s26, s2, 2048
s_lshr_b32 s27, s26, 4
s_and_b32 s26, s26, 15
s_add_u32 s26, s26, 48
s_cmp_ge_u32 s2, 2048
s_cselect_b32 s4, s8, s4
s_cselect_b32 s5, s9, s5
s_cselect_b32 s6, s10, s6
s_cselect_b32 s7, s11, s7
s_cselect_b32 s24, s27, s24
s_cselect_b32 s25, s26, s25
s_cselect_b32 s30, 0x10000, 0
'''+srd(12,4,0x4000000)+srd(16,6,0x4000000)+srd(20,28,WS)+'''s_lshl_b32 s31, s24, 9
s_add_u32 s30, s30, s31
v_and_b32 v1, 15, v0
v_lshlrev_b32 v1, 5, v1
'''
for k in range(4): b+=f's_add_u32 s31, s30, {k*0x4000}\nbuffer_load_dwordx4 v[{32+8*k}:{35+8*k}], v1, s[20:23], s31 offen\nbuffer_load_dwordx4 v[{36+8*k}:{39+8*k}], v1, s[20:23], s31 offen offset:16\n'
b+='''s_lshl_b32 s31, s24, 21
s_lshl_b32 s25, s25, 15
s_add_u32 s31, s31, s25
v_and_b32 v2, 63, v0
v_lshlrev_b32 v2, 4, v2
v_lshrrev_b32 v3, 6, v0
v_lshl_add_u32 v2, v3, 13, v2
v_add_u32 v2, s31, v2
s_mov_b32 s32, 0
s_mov_b32 s33, 4096
s_mov_b32 s34, 8192
s_mov_b32 s35, 12288
'''
for t,sr in ((64,12),(96,16)):
    for i in range(8): b+=f'buffer_load_dwordx4 v[{t+4*i}:{t+3+4*i}], v2, s[{sr}:{sr+3}], s{32+i//4} offen offset:{(i%4)*1024} nt\n'
b+='s_waitcnt vmcnt(16)\n'
for k in range(1,4): b+=''.join(f'v_add_f32 v{32+j}, v{32+j}, v{32+8*k+j}\n' for j in range(8))
b+=''.join(f'v_cvt_pk_bf16_f32 v{4+j}, v{32+2*j}, v{33+2*j}\n' for j in range(4))
b+='s_waitcnt vmcnt(8)\n'
for i in range(8):
    b+=f'v_mov_b32 v{16+i}, 0\n'+''.join(f'v_dot2_f32_bf16 v{16+i}, v{64+4*i+j}, v{4+j}, v{16+i}\n' for j in range(4))
b+='s_nop 4\n'
for r in (8,4,2,1):
    for i in range(8): b+=f'v_add_f32_dpp v{40+i}, v{16+i}, v{16+i} row_ror:{r} row_mask:0xf bank_mask:0xf\n'
    b+='s_nop 1\n'+''.join(f'v_mov_b32 v{16+i}, v{40+i}\n' for i in range(8))+'s_nop 1\n'
b+='s_mov_b32 s36, 0x3db504f3\n'
for i in range(8):
    b+=f'v_cvt_pk_bf16_f32 v40, v{16+i}, v{16+i}\nv_lshlrev_b32 v40, 16, v40\nv_mul_f32 v40, s36, v40\nv_cvt_pk_bf16_f32 v40, v40, v40\nv_lshlrev_b32 v{16+i}, 16, v40\n'
b+='v_mov_b32 v8, v16\n'+''.join(f'v_max_f32 v8, v8, v{16+i}\n' for i in range(1,8))
b+='s_mov_b32 s36, 0x3fb8aa3b\nv_mov_b32 v9, 0\n'+Z
for i in range(8): b+=f'v_sub_f32 v{16+i}, v{16+i}, v8\nv_mul_f32 v{16+i}, s36, v{16+i}\nv_exp_f32 v{16+i}, v{16+i}\ns_nop 0\nv_add_f32 v9, v9, v{16+i}\n'
b+='s_waitcnt vmcnt(0)\n'
for i in range(8): b+=fma8(96+4*i,16+i)
b+=f'''v_lshlrev_b32 v10, 5, v0
ds_write_b128 v10, v[32:35]
ds_write_b128 v10, v[36:39] offset:16
v_lshrrev_b32 v11, 4, v0
v_lshlrev_b32 v11, 3, v11
ds_write_b64 v11, v[8:9] offset:8192
s_waitcnt lgkmcnt(0)
s_barrier
v_cmp_gt_u32 vcc, 128, v0
s_and_saveexec_b64 s[26:27], vcc
s_cbranch_execz at_kernel_end
v_mov_b32 v12, 0
'''+''.join(f'ds_read_b64 v[{40+2*g}:{41+2*g}], v12 offset:{8192+8*g}\n' for g in range(16))
b+='v_lshlrev_b32 v12, 2, v0\n'+''.join(f'ds_read_b32 v{72+g}, v12 offset:{512*g}\n' for g in range(16))
b+='s_waitcnt lgkmcnt(0)\nv_mov_b32 v8, v40\n'+''.join(f'v_max_f32 v8, v8, v{40+2*g}\n' for g in range(1,16))
b+='v_mov_b32 v9, 0\nv_mov_b32 v20, 0\n'
for g in range(16): b+=f'v_sub_f32 v21, v{40+2*g}, v8\nv_mul_f32 v21, s36, v21\nv_exp_f32 v21, v21\ns_nop 0\nv_fmac_f32 v9, v21, v{41+2*g}\nv_fmac_f32 v20, v21, v{72+g}\n'
b+=f'''s_lshl_b32 s31, s2, 9
s_add_u32 s31, s31, {OACC}
buffer_store_dword v20, v12, s[20:23], s31 offen
s_lshl_b32 s31, s2, 3
s_add_u32 s31, s31, {OML}
v_mov_b32 v12, 0
v_cmp_eq_u32 vcc, 0, v0
s_and_saveexec_b64 s[26:27], vcc
s_cbranch_execz at_kernel_end
buffer_store_dwordx2 v[8:9], v12, s[20:23], s31 offen
s_waitcnt vmcnt(0)
'''
kern('at_kernel',b,128)
b='''s_cmp_ge_u32 s2, 320
s_cbranch_scc1 op_kernel_end
s_load_dwordx2 s[4:5], s[0:1], 32
s_load_dwordx2 s[6:7], s[0:1], 72
s_load_dwordx2 s[28:29], s[0:1], 96
s_waitcnt lgkmcnt(0)
s_cmp_ge_u32 s2, 160
s_cselect_b32 s4, s6, s4
s_cselect_b32 s5, s7, s5
s_cselect_b32 s3, 1, 0
s_cselect_b32 s24, 160, 0
s_cselect_b32 s38, 16, 64
s_cselect_b32 s39, 2048, 0
s_sub_u32 s24, s2, s24
s_mul_i32 s25, s24, 6554
s_lshr_b32 s25, s25, 16
s_mul_i32 s26, s25, 10
s_sub_u32 s26, s24, s26
'''+srd(16,4,5242880)+srd(20,28,WS)+'''s_lshl_b32 s27, s25, 1
v_lshrrev_b32 v1, 7, v0
v_add_u32 v1, s27, v1
v_mul_lo_u32 v1, v1, s38
v_add_u32 v1, s39, v1
v_lshlrev_b32 v2, 3, v1
v_and_b32 v3, 127, v0
v_lshlrev_b32 v3, 2, v3
v_lshl_add_u32 v3, v1, 9, v3
s_mov_b32 s36, 0x3fb8aa3b
v_mov_b32 v8, 0xff800000
v_mov_b32 v9, 0
v_mov_b32 v20, 0
'''
b=b.replace('v_lshlrev_b32 v2, 3, v1\n',f'v_lshlrev_b32 v2, 3, v1\nv_add_u32 v2, {OML}, v2\n').replace('v_lshl_add_u32 v3, v1, 9, v3\n',f'v_lshl_add_u32 v3, v1, 9, v3\nv_add_u32 v3, {OACC}, v3\n')
WO='''v_lshrrev_b32 v1, 3, v0
s_lshl_b32 s27, s25, 8
v_add_u32 v1, s27, v1
v_mul_u32_u24 v1, 1280, v1
v_and_b32 v2, 7, v0
v_lshlrev_b32 v2, 4, v2
v_add_u32 v2, v1, v2
s_lshl_b32 s27, s26, 7
v_add_u32 v2, s27, v2
'''+''.join(f'buffer_load_dwordx4 v[{208+4*i}:{211+4*i}], v2, s[16:19], 0 offen nt\nv_add_u32 v2, 40960, v2\n' for i in range(8))
b=b.replace('s_lshl_b32 s27, s25, 1\n',WO+'s_lshl_b32 s27, s25, 1\n')
def comb(n,lab):
    r=''
    for h in range(0,n,32):
        m=min(32,n-h)
        r+=''.join(f'buffer_load_dwordx2 v[{112+2*c}:{113+2*c}], v2, s[20:23], 0 offen offset:{8*(c+h)}\nbuffer_load_dword v{40+c}, v3, s[20:23], 0 offen\nv_add_u32 v3, 512, v3\n' for c in range(m))
        r+='s_waitcnt vmcnt(0)\nv_mov_b32 v11, v8\n'+''.join(f'v_max_f32 v8, v8, v{112+2*c}\n' for c in range(m))
        if h: r+='v_sub_f32 v10, v11, v8\nv_mul_f32 v10, s36, v10\nv_exp_f32 v10, v10\ns_nop 0\nv_mul_f32 v9, v9, v10\nv_mul_f32 v20, v20, v10\n'
        for c in range(m): r+=f'v_sub_f32 v10, v{112+2*c}, v8\nv_mul_f32 v10, s36, v10\nv_exp_f32 v10, v10\ns_nop 0\nv_fmac_f32 v9, v10, v{113+2*c}\nv_fmac_f32 v20, v10, v{40+c}\n'
    return r
b+='s_cmp_eq_u32 s38, 16\ns_cbranch_scc1 op_b\n'+comb(64,0)+'s_branch op_j\nop_b:\n'+comb(16,0)+'op_j:\n'
b+='''v_rcp_f32 v9, v9
s_nop 0
v_mul_f32 v20, v20, v9
v_cvt_pk_bf16_f32 v20, v20, v20
v_lshlrev_b32 v20, 16, v20
v_lshlrev_b32 v10, 2, v0
ds_write_b32 v10, v20 offset:8192
s_waitcnt lgkmcnt(0)
s_barrier
v_lshrrev_b32 v1, 3, v0
v_lshlrev_b32 v10, 2, v1
'''+''.join(f'ds_read_b32 v{24+i}, v10 offset:{8192+128*i}\n' for i in range(8))+''''''
b+=Z+'s_waitcnt vmcnt(0) lgkmcnt(0)\n'
for i in range(8): b+=fma8(208+4*i,24+i)
b+=RED+f'''s_mul_i32 s24, s3, 16
s_add_u32 s24, s24, s25
s_mul_i32 s24, s24, 2560
s_lshl_b32 s27, s26, 8
s_add_u32 s24, s24, s27
s_add_u32 s24, s24, {OOP}
v_lshlrev_b32 v1, 2, v0
v_cmp_gt_u32 vcc, 64, v0
s_and_saveexec_b64 s[26:27], vcc
s_cbranch_execz op_kernel_end
buffer_store_dword v20, v1, s[20:23], s24 offen sc0 sc1
s_waitcnt vmcnt(0)
s_mul_i32 s40, s3, 10
s_lshl_b32 s41, s26, 0
'''
b=b.replace('s_and_saveexec_b64 s[26:27], vcc\ns_cbranch_execz op_kernel_end','s_mov_b32 s42, s26\ns_and_saveexec_b64 s[44:45], vcc\ns_cbranch_execz op_kernel_end')
b=b.replace('s_lshl_b32 s41, s26, 0\n','')
b=b.replace('s_load_dwordx2 s[28:29], s[0:1], 96\n','s_load_dwordx2 s[28:29], s[0:1], 96\ns_load_dwordx4 s[8:11], s[0:1], 80\n')
b+=srd(12,10,256)+srd(48,8,2560)+f'''s_add_u32 s40, s40, s42
s_lshl_b32 s40, s40, 2
v_mov_b32 v5, 1
v_mov_b32 v6, s40
v_cmp_eq_u32 vcc, 0, v0
s_and_saveexec_b64 s[44:45], vcc
buffer_atomic_add v5, v6, s[12:15], 0 offen sc0 sc1
s_waitcnt vmcnt(0)
s_mov_b64 exec, s[44:45]
s_nop 4
v_readfirstlane_b32 s41, v5
s_nop 4
s_cmp_lg_u32 s41, 15
s_cbranch_scc1 op_kernel_end
s_mul_i32 s24, s3, 40960
s_lshl_b32 s27, s42, 8
s_add_u32 s24, s24, s27
s_add_u32 s24, s24, {OOP}
'''+''.join(f'buffer_load_dword v{40+j}, v1, s[20:23], s24 offen sc0 sc1\ns_add_u32 s24, s24, 2560\n' for j in range(16))+'s_waitcnt vmcnt(0)\n'+''.join(f'v_add_f32 v40, v40, v{40+j}\n' for j in range(1,16))+'''v_cvt_pk_bf16_f32 v8, v40, v40
s_mul_i32 s24, s3, 1280
s_lshl_b32 s27, s42, 7
s_add_u32 s24, s24, s27
v_lshlrev_b32 v1, 1, v0
buffer_store_short v8, v1, s[48:51], s24 offen
s_waitcnt vmcnt(0)
'''
kern('op_kernel',b,240)
A('.section .rodata,"a"')
for n,vg in K:
    A(f'.p2align 6\n.amdhsa_kernel {n}\n  .amdhsa_next_free_vgpr {vg}\n  .amdhsa_next_free_sgpr 56\n  .amdhsa_accum_offset {vg}\n  .amdhsa_group_segment_fixed_size 0\n  .amdhsa_kernarg_size 104\n  .amdhsa_user_sgpr_count 2\n  .amdhsa_user_sgpr_kernarg_segment_ptr 1\n  .amdhsa_system_sgpr_workgroup_id_x 1\n.end_amdhsa_kernel')
open('concat_heads__gqa_block_cached__sliding_block_cached__decode.s','w').write('\n'.join(o)+'\n')
```
